```python
import torch

def _softmax(x, axis=-1):
    return torch.softmax(x, dim=axis)
def _gelu(x):
    return torch.nn.functional.gelu(x, approximate="tanh")
def _silu(x):
    return torch.nn.functional.silu(x)
def _sigmoid(x):
    return torch.sigmoid(x)
def _layernorm(x, axis=-1, eps=1e-5):
    m = x.mean(dim=axis, keepdim=True)
    v = x.var(dim=axis, keepdim=True, unbiased=False)
    return (x - m) / torch.sqrt(v + eps)
def _scatter_add(tgt, idx, src, axis=0):
    return tgt.clone().index_add_(axis, idx, src)
def _segment_sum(src, seg, n):
    out = torch.zeros((n,) + src.shape[1:], dtype=src.dtype)
    return out.index_add_(0, seg, src)
def _pad(x, pw):
    flat = tuple(v for pair in reversed(pw) for v in pair)
    return torch.nn.functional.pad(x, flat)

kernel_name = 'standalone__mixer_channel_mlp__prompt'

def setup_inputs():

    _w = (lambda a: (lambda t: t.to(torch.bfloat16) if t.is_floating_point() else t)(torch.as_tensor(a)))
    B, S, D, F = 1, 2048, 1024, 3584
    return {
        "x": _w((lambda *s: torch.randn(*s, dtype=torch.bfloat16) * 0.05)(B, S, D)),
        "w1": _w((lambda *s: torch.randn(*s, dtype=torch.bfloat16) * 0.8)(D, F) * (D ** -0.5)),
        "b1": _w((lambda *s: torch.randn(*s, dtype=torch.bfloat16) * 0.4)(F)),
        "w2": _w((lambda *s: torch.randn(*s, dtype=torch.bfloat16) * 0.05)(F, D) * (F ** -0.5)),
        "b2": _w((lambda *s: torch.randn(*s, dtype=torch.bfloat16) * 0.05)(D)),
    }

def reference(x, w1, b1, w2, b2):
    y = _layernorm(x, axis=-1)
    h = _gelu(torch.einsum("bsd,df->bsf", y, w1) + b1)
    return torch.einsum("bsf,fd->bsd", h, w2) + b2
```

```python
import re

_REG = re.compile(r"^(-|\|)?([vas])(\d+)\|?$")
_RNG = re.compile(r"^(-)?([vas])\[(\d+):(\d+)\]$")

TRANS = ("v_exp_f32", "v_rcp_f32", "v_rsq_f32", "v_log_f32", "v_sqrt_f32")


def regs_of(op):
    op = op.strip()
    m = _REG.match(op)
    if m:
        return [(m.group(2), int(m.group(3)))]
    m = _RNG.match(op)
    if m:
        return [(m.group(2), k) for k in range(int(m.group(3)), int(m.group(4)) + 1)]
    if op == "vcc":
        return [("s", "vcc")]
    if op == "exec":
        return [("s", "exec")]
    if op == "m0":
        return [("s", "m0")]
    return []


class Inst:
    __slots__ = ("text", "mn", "kind", "rd", "wr", "ops", "states", "srcc", "srcab", "data")

    def __init__(self, text):
        self.text = text
        parts = text.split(None, 1)
        mn = self.mn = parts[0]
        rest = parts[1] if len(parts) > 1 else ""
        ops = [o.strip() for o in rest.split(",")] if rest else []
        mods = ""
        clean = []
        depth_fix = []
        i = 0
        while i < len(ops):
            o = ops[i]
            while o.count("[") > o.count("]"):
                i += 1
                o += "," + ops[i]
            depth_fix.append(o)
            i += 1
        for o in depth_fix:
            p = o.split(None, 1)
            clean.append(p[0] if p else "")
            if len(p) > 1:
                mods += " " + p[1]
        self.ops = clean
        self.states = 1
        self.srcc = []
        self.srcab = []
        self.data = []
        R = [regs_of(o) for o in clean]
        flat = lambda l: [x for y in l for x in y]
        if mn.endswith(":"):
            self.kind = "label"; self.rd = []; self.wr = []; self.states = 0
        elif mn.startswith("v_mfma"):
            self.kind = "mfma"; self.wr = R[0]; self.rd = flat(R[1:]); self.srcc = R[3]; self.srcab = R[1] + R[2]
        elif mn.startswith("v_permlane"):
            self.kind = "perm"; self.wr = R[0] + R[1]; self.rd = R[0] + R[1]
        elif mn.startswith("v_dot2"):
            self.kind = "dot"; self.wr = R[0]; self.rd = flat(R[1:]) + (R[0] if mn.startswith("v_dot2c") else [])
            self.srcc = R[3] if len(R) > 3 else R[0]; self.srcab = R[1] + R[2]
        elif mn.startswith("v_"):
            self.kind = "trans" if mn in TRANS else "valu"
            self.wr = R[0]; self.rd = flat(R[1:])
            if mn.startswith("v_fmac") or mn.startswith("v_writelane"):
                self.rd = self.rd + R[0]
        elif mn.startswith("ds_read"):
            self.kind = "ds"; self.wr = R[0]; self.rd = flat(R[1:])
        elif mn.startswith("ds_write"):
            self.kind = "ds"; self.wr = []; self.rd = flat(R)
        elif mn.startswith("buffer_load"):
            self.kind = "vmem"
            if " lds" in mods:
                self.wr = []; self.rd = flat(R) + [("s", "m0")]
            else:
                self.wr = R[0]; self.rd = flat(R[1:])
        elif mn.startswith("buffer_store"):
            self.kind = "vmem"; self.wr = []; self.rd = flat(R)
            if mn.endswith("x4") or mn.endswith("x3"):
                self.data = R[0]
        elif mn.startswith("s_load") or mn in ("s_memtime", "s_memrealtime"):
            self.kind = "smem"; self.wr = R[0]; self.rd = flat(R[1:])
        elif mn == "s_nop":
            self.kind = "nop"; self.wr = []; self.rd = []; self.states = int(clean[0]) + 1
        elif mn in ("s_waitcnt", "s_barrier", "s_endpgm", "s_sleep", "s_setprio") or mn.startswith("s_cbranch") or mn == "s_branch":
            self.kind = "ctl"; self.wr = []; self.rd = []
        elif mn.startswith("s_cmp") or mn.startswith("s_bitcmp"):
            self.kind = "salu"; self.wr = []; self.rd = flat(R)
        elif mn.startswith("s_"):
            self.kind = "salu"; self.wr = R[0]; self.rd = flat(R[1:])
        else:
            raise ValueError("unknown instruction: " + text)


VALU_KINDS = ("valu", "trans", "perm", "dot")


def need_states(p, c):
    n = 0
    pw = set(p.wr)
    if p.kind in VALU_KINDS:
        vw = {r for r in pw if r[0] in "va"}
        sw = {r for r in pw if r[0] == "s"}
        if vw:
            if c.kind == "mfma" and vw & set(c.rd):
                n = max(n, 2)
            if c.kind == "perm" and vw & set(c.rd):
                n = max(n, 2)
            if c.mn in ("v_readfirstlane_b32", "v_readlane_b32") and vw & set(c.rd):
                n = max(n, 1)
            if p.kind == "trans" and c.kind in ("valu", "perm", "dot") and vw & set(c.rd):
                n = max(n, 1)
            if p.kind == "dot":
                if c.kind == "dot" and c.mn == p.mn:
                    if vw & set(c.srcab):
                        n = max(n, 3)
                elif vw & (set(c.rd) | set(c.wr)):
                    n = max(n, 3)
        if sw:
            if c.kind == "vmem" and sw & set(c.rd):
                n = max(n, 5)
            if c.kind in VALU_KINDS and sw & set(c.rd):
                n = max(n, 4 if c.mn in ("v_readlane_b32", "v_writelane_b32") else 2)
            if c.kind == "salu" and sw & set(c.rd):
                n = max(n, 1)
    if p.kind == "mfma":
        big = "32x32" in p.mn
        if c.kind == "mfma":
            if pw & set(c.srcab):
                n = max(n, 12 if big else 8)
            if pw & set(c.srcc) and not (p.wr == c.srcc and p.mn == c.mn):
                n = max(n, 10 if big else 6)
            if pw & set(c.wr) and not (p.wr == c.srcc and p.mn == c.mn):
                n = max(n, 12 if big else 8)
        elif c.kind in VALU_KINDS or c.kind in ("vmem", "ds"):
            if pw & (set(c.rd) | set(c.wr)):
                n = max(n, 12 if big else 8)
        if c.kind in VALU_KINDS and set(p.srcc) & set(c.wr):
            n = max(n, 7 if big else 3)
    if p.kind == "salu" and ("s", "m0") in pw and c.kind == "vmem" and ("s", "m0") in c.rd:
        n = max(n, 1)
    if p.kind == "salu" and ("s", "m0") in pw and c.mn in ("v_writelane_b32", "v_readlane_b32") and ("s", "m0") in c.rd:
        n = max(n, 1)
    if p.kind == "vmem" and p.data and set(p.data) & set(c.wr):
        n = max(n, 2 if c.kind in VALU_KINDS else 1)
    return n


class Emitter:
    def __init__(self):
        self.out = []
        self.tail = []
        self.vm_issued = 0
        self.vm_done = 0
        self.lg_issued = 0
        self.lg_done = 0
        self.smem_pending = set()
        self.pending = {}
        self.nops = 0
        self.max_vm = 0

    def _append(self, ins):
        need = 0
        dist = 0
        for p in reversed(self.out[-24:]):
            n = need_states(p, ins)
            if n > dist:
                need = max(need, n - dist)
            dist += p.states
            if dist >= 14:
                break
        if need:
            self.out.append(Inst(f"s_nop {need - 1}"))
            self.nops += 1
        self.out.append(ins)

    def wait(self, vm=None, lg=None):
        parts = []
        if vm is not None and vm > self.vm_done:
            n = min(self.vm_issued - vm, 63)
            parts.append(f"vmcnt({n})")
            self.vm_done = self.vm_issued - n
        if lg is not None and lg > self.lg_done:
            n = min(self.lg_issued - lg, 15)
            parts.append(f"lgkmcnt({n})")
            self.lg_done = self.lg_issued - n
            if n == 0:
                self.smem_pending.clear()
        if parts:
            self._append(Inst("s_waitcnt " + " ".join(parts)))

    def wait_smem(self):
        self._append(Inst("s_waitcnt lgkmcnt(0)"))
        self.lg_done = self.lg_issued
        self.smem_pending.clear()

    def wait_regs(self, regs):
        vm = lg = None
        for r in regs:
            p = self.pending.get(r)
            if p:
                if p[0] == "vm":
                    vm = max(vm or 0, p[1])
                else:
                    lg = max(lg or 0, p[1])
        self.wait(vm, lg)

    def __call__(self, text):
        ins = Inst(text)
        touched = list(ins.rd) + list(ins.wr)
        if self.smem_pending & set(touched):
            self.wait_smem()
        self.wait_regs(touched)
        for r in touched:
            self.pending.pop(r, None)
        self._append(ins)
        if ins.kind == "vmem":
            self.vm_issued += 1
            self.max_vm = max(self.max_vm, self.vm_issued - self.vm_done)
            for r in ins.wr:
                self.pending[r] = ("vm", self.vm_issued)
            return self.vm_issued
        if ins.kind == "ds":
            self.lg_issued += 1
            for r in ins.wr:
                self.pending[r] = ("lg", self.lg_issued)
            return self.lg_issued
        if ins.kind == "smem":
            self.smem_pending |= set(ins.wr)
        return None

    def many(self, text):
        for ln in text.strip().split("\n"):
            ln = ln.split(";")[0].strip()
            if ln:
                self(ln)

    def label(self, name):
        self.out.append(Inst(name + ":"))

    def text(self):
        return "\n".join(i.text for i in self.out) + "\n" + "\n".join(self.tail) + "\n"

    def stats(self):
        d = {}
        for i in self.out:
            d[i.kind] = d.get(i.kind, 0) + 1
        return d


class Alloc:
    def __init__(self, kind, lo, hi):
        self.kind = kind
        self.free = set(range(lo, hi))
        self.high = -1
        self.names = {}

    def get(self, name, n=1, align=1):
        base = min(self.free)
        b = (base + align - 1) // align * align
        while not all((b + k) in self.free for k in range(n)):
            b += align
            if b > 600:
                raise RuntimeError(f"out of {self.kind} registers for {name}")
        for k in range(n):
            self.free.remove(b + k)
        self.high = max(self.high, b + n - 1)
        self.names[name] = (b, n)
        return b

    def release(self, name):
        b, n = self.names.pop(name)
        for k in range(n):
            self.free.add(b + k)
```

```python
import sys, os, math, struct
sys.path.insert(0, os.path.dirname(os.path.abspath(__file__)))
from asmlib import Emitter, Alloc, Inst

KNAME = "standalone__mixer_channel_mlp__prompt_kernel"

WS_E = 0
WS_FH = 0x1000
WS_FP = 0x8000
WS_FR = 0x10000
WS_FC = 0x14000
WS_RS = 0x40000
WS_CS = 0x80000
WS_ST = 0xC0000
WS_H = 0x200000
WS_P = 0x1200000
WS_SIZE = 0x1A00000

SLOT = 16384
LDS_TAB = 9 * SLOT
SHIFT = 4096
W1_BYTES = 1024 * 3584 * 2
W2_BYTES = W1_BYTES
X_BYTES = 2048 * 1024 * 2


def fbits(x):
    return struct.unpack("<I", struct.pack("<f", x))[0]


class Cfg:
    ng = 6
    stamps = False
    gelu = "pk"
    gelu_at = [16, 17, 19, 21, 24, 26, 28]
    flag_at = [20, 24, 29, 31]
    h_first = 25
    spin_max = 1 << 16
    w2_prefetch = 4
    xr = 4
    p_store = 1
    p_flag = 3
    p_poll = 4
    p_chk = 5
    diag = None
    lst = None


def gen(cfg):
    E = Emitter()
    e = E
    SA = Alloc("s", 3, 102)
    VA = Alloc("v", 112, 256)

    sKA = SA.get("ka", 16, 4)
    RX = SA.get("RX", 4, 4); RW1A = SA.get("RW1A", 4, 4); RW1B = SA.get("RW1B", 4, 4)
    RW2 = [SA.get("RW2R", 4, 4), SA.get("RW2L", 4, 4)]
    RWS = SA.get("RWS", 4, 4); RB = SA.get("RB", 4, 4)
    tW = SA.get("tW", 16); tX = SA.get("tX", 16)
    sKC = SA.get("kc", 2, 2)
    sW = SA.get("w"); sI = SA.get("i"); sJ = SA.get("j"); sWO = SA.get("woff"); sONE = SA.get("ones")
    sT0 = SA.get("t0"); sT1 = SA.get("t1"); sT2 = SA.get("t2"); sSPIN = SA.get("spin")
    sHST = SA.get("hst"); sFH = SA.get("fh"); sFHW = SA.get("fhw")
    sSTA = SA.get("sta", 4, 2) if cfg.stamps else None
    kX, kW1, kB1, kW2, kB2, kOUT, kDBG, kWS = [sKA + 2 * k for k in range(8)]
    tW2 = tX; tH = tX + 8
    tW2b = kX
    ROUT = RX
    srd = lambda b: f"s[{b}:{b+3}]"

    FR = VA.get("FR", 48, 4)
    TRA = VA.get("TRA", 8); TRB = VA.get("TRB", 4)
    SB = VA.get("SB", 16, 4); T = VA.get("T", 16, 4); PK = VA.get("PK", 8, 4); BR = VA.get("BR", 8, 2)
    RR = VA.get("RR", 2, 2); NM = VA.get("NM", 2, 2)
    VW1A = VA.get("VW1A"); VW1B = VA.get("VW1B"); VW32 = VA.get("VW32"); VW2 = VA.get("VW2")
    VL16 = VA.get("VL16"); VH = VA.get("VH"); VL4 = VA.get("VL4"); VF8 = VA.get("VF8")
    VN = VA.get("VN"); VPOLL = VA.get("VPOLL"); VPOLL2 = VA.get("VPOLL2"); VFL = VA.get("VFL"); VSB = VA.get("VSB")
    VOUT = VA.get("VOUT"); VDUM = VA.get("VDUM"); VLANE = VA.get("VLANE"); VK0 = VA.get("VK0"); VD2 = VA.get("VD2")
    VST = VA.get("VST") if cfg.stamps else None
    VX = 64; XR = 68; CB = 72; TA = 76; TB_ = 77; TC = 78; TD = 79; AC = 80
    VB1 = 84; VTW = 85; VF16 = 86
    vr = lambda b, n: f"v[{b}:{b+n-1}]"
    ar = lambda b, n: f"a[{b}:{b+n-1}]"

    nstamp = [0]

    sDG = SA.get("dg", 4, 2) if cfg.diag else None

    def stamp():
        if cfg.diag:
            k = nstamp[0]; nstamp[0] += 1
            if k == cfg.diag[0]:
                E._append(Inst(f"s_memrealtime s[{sDG}:{sDG+1}]"))
            if k == cfg.diag[1]:
                E._append(Inst(f"s_memrealtime s[{sDG+2}:{sDG+3}]"))
            return
        if not cfg.stamps:
            return
        k = nstamp[0]; nstamp[0] += 1
        cur = sSTA + 2 * (k % 2); prev = sSTA + 2 * ((k + 1) % 2)
        E._append(Inst(f"s_memtime s[{cur}:{cur+1}]"))
        if k > 0:
            E._append(Inst(f"v_writelane_b32 v{VST}, s{prev}, {k-1}"))

    nslow = [0]

    def poll_check(vp, voff, soff, stage):
        k = nslow[0]; nslow[0] += 1

        def cmp_lines():
            if stage is None:
                return [f"v_cmp_ne_u32 vcc, v{vp}, v{VN}"]
            return [f"v_sub_u32 v{vp}, v{vp}, v{VN}", f"v_add_u32 v{vp}, {-stage}, v{vp}",
                    f"v_cmp_le_u32 vcc, {16 - stage}, v{vp}"]
        for ln in cmp_lines():
            e(ln)
        e(f"s_cbranch_vccnz L_slow{k}")
        E.label(f"L_back{k}")
        E.tail.append("\n".join(
            [f"L_slow{k}:", f"s_mov_b32 s{sSPIN}, 0", f"L_spin{k}:", "s_sleep 2",
             f"buffer_load_dword v{vp}, v{voff}, {srd(RWS)}, s{soff} offen sc1", "s_waitcnt vmcnt(0)"]
            + cmp_lines() +
            [f"s_cbranch_vccz L_back{k}", f"s_add_u32 s{sSPIN}, s{sSPIN}, 1",
             f"s_cmp_lt_u32 s{sSPIN}, {cfg.spin_max}", f"s_cbranch_scc1 L_spin{k}", f"s_branch L_back{k}"]))

    SS = []
    for n in range(16):
        SS.append(dict(kind="w1", g=n % 2, sig=n // 2))
    for n in range(8):
        SS.append(dict(kind="w1", g=2, sig=n))
    for m in range(4):
        SS.append(dict(kind="w32", m=m))
    ng = cfg.ng
    for gam in range(14 - ng):
        SS.append(dict(kind="w2", gam=gam, half=0)); SS.append(dict(kind="w2", gam=gam, half=1))
    for gam in range(14 - ng, 14):
        SS.append(dict(kind="w2", gam=gam, half=0))
    for gam in range(14 - ng, 14):
        SS.append(dict(kind="w2", gam=gam, half=1))
    NSS = len(SS)
    assert NSS == 56
    need = {}; last = {}
    for n, s in enumerate(SS):
        if s["kind"] == "w2":
            need.setdefault(s["gam"], n); last[s["gam"]] = n
    lastR = max(n for n, s in enumerate(SS) if s["kind"] == "w2" and s["half"] == 0)

    slot_of = {}; issue_iv = {}
    free_at = {s: -1 for s in range(6)}
    free_at[6] = free_at[7] = 15
    nxt = 0
    for m in range(4):
        slot_of[m] = m; issue_iv[m] = -1; free_at[m] = m + 2
    nxt = 4
    for iv in range(0, NSS):
        cnt = 0
        while nxt < NSS and cnt < (2 if iv >= 15 else 1):
            c = [s for s in free_at if free_at[s] <= iv]
            if not c:
                break
            s = min(c, key=lambda s: (free_at[s], s))
            slot_of[nxt] = s; issue_iv[nxt] = iv; free_at[s] = nxt + 2
            nxt += 1; cnt += 1
    for m in range(NSS):
        assert issue_iv[m] < m, (m, issue_iv[m])

    tile_tok = {}
    w2_round = [0, 0]

    def tile_items(m):
        s = SS[m]
        it = []
        base = slot_of[m] * SLOT
        if s["kind"] == "w2":
            h = s["half"]; p = s["gam"] // 2

            def bump():
                while w2_round[h] < p:
                    r = RW2[h]
                    e(f"s_add_u32 s{r}, s{r}, 0x10000"); e(f"s_addc_u32 s{r+1}, s{r+1}, 0")
                    e(f"s_sub_u32 s{r+2}, s{r+2}, 0x10000")
                    w2_round[h] += 1
            it.append(bump)
        if m == 16:
            def b16():
                e(f"s_add_u32 s{RW1A}, s{RW1A}, 256"); e(f"s_addc_u32 s{RW1A+1}, s{RW1A+1}, 0")
                e(f"s_sub_u32 s{RW1A+2}, s{RW1A+2}, 256")
            it.append(b16)
        if m == 24:
            def b24():
                e(f"s_sub_u32 s{RW1B}, s{RW1B}, 128"); e(f"s_subb_u32 s{RW1B+1}, s{RW1B+1}, 0")
                e(f"s_add_u32 s{RW1B+2}, s{RW1B+2}, 128")
            it.append(b24)
        if s["kind"] == "w32":
            for q in (1, 2, 3):
                p = 4 * s["m"] + q
                d = 2048 * (p & 1) - 1024 * (p % 4)
                it.append(lambda p=p, d=d: e(f"s_add_u32 s{tW+p}, s{tW+p}, {d & 0xffffffff}"))
        it.append(lambda: e(f"s_add_u32 m0, s{sWO}, {base}"))
        for q in range(4):
            def dma(q=q):
                off = f" offset:{1024*q}" if q else ""
                if s["kind"] == "w1":
                    r = RW1B if s["g"] == 1 else RW1A
                    t = e(f"buffer_load_dwordx4 v{VW1B if q & 1 else VW1A}, {srd(r)}, s{tW + 2*s['sig'] + q//2} offen{off} lds")
                elif s["kind"] == "w32":
                    t = e(f"buffer_load_dwordx4 v{VW32}, {srd(RW1B)}, s{tW + 4*s['m'] + q} offen{off} lds")
                else:
                    tab = tW2b if s["gam"] // 2 == 6 else tW2
                    t = e(f"buffer_load_dwordx4 v{VW2}, {srd(RW2[s['half']])}, s{tab + 4*(s['gam'] % 2) + q} offen{off} lds")
                tile_tok[m] = t
            it.append(dma)
        return it

    def unit(U):
        n, u = divmod(U, 4)
        s = SS[n]
        sl = slot_of[n]; win = sl // 4; so = (sl % 4) * SLOT
        fb = FR + 16 * (U % 3)
        reads = []
        if s["kind"] == "w1":
            acc = 32 * s["g"] + 8 * u; breg = 32 * s["sig"]; first = s["sig"] == 0
            for st in range(4):
                for uu in range(2):
                    reads.append(f"ds_read_b64_tr_b16 {vr(fb + 4*st + 2*uu, 2)}, v{TRA + 4*win + u} offset:{so + 1024*st + 512*uu}")
        elif s["kind"] == "w32":
            f2 = u % 2; hs = u // 2
            acc = 96 + 8 * f2; breg = 32 * (2 * s["m"] + hs); first = s["m"] == 0 and hs == 0
            for st in range(4):
                s8 = 4 * hs + st
                for uu in range(2):
                    reads.append(f"ds_read_b64_tr_b16 {vr(fb + 4*st + 2*uu, 2)}, v{TRB + 2*win + f2} offset:{so + 8192*(s8 % 2) + 1024*(s8//2) + 256*uu}")
        else:
            acc = 32 * s["half"] + 8 * u; breg = 32 * (s["gam"] % 8); first = s["gam"] == 0 and s["half"] == 0
            for st in range(4):
                for uu in range(2):
                    reads.append(f"ds_read_b64_tr_b16 {vr(fb + 4*st + 2*uu, 2)}, v{TRA + 4*win + u} offset:{so + 1024*st + 8192*uu}")
        mf = []
        for tb, order in ((0, (0, 1, 2, 3)), (1, (3, 2, 1, 0))):
            for k, st in enumerate(order):
                a = acc + 4 * tb
                c = "0" if (first and k == 0) else vr(a, 4)
                mf.append(f"v_mfma_f32_16x16x32_bf16 {vr(a, 4)}, {vr(fb + 4*st, 4)}, {ar(breg + 8*st + 4*tb, 4)}, {c}")
        fregs = [("v", fb + k) for k in range(16)] + [("a", breg + k) for k in range(32)]
        return reads, mf, fregs

    side = {n: [] for n in range(NSS)}
    pre_barrier = {n: [] for n in range(NSS + 1)}

    def add(n, gap, fn, cost=1):
        side[n].append((gap, len(side[n]), fn, cost))

    def add_seq(n, gap0, step, fns):
        for k, fn in enumerate(fns):
            add(n, min(31, gap0 + int(k * step)), fn)

    e(f"s_cmp_ge_u32 s2, 256")
    e(f"s_cbranch_scc1 L_end")
    e(f"s_load_dwordx16 s[{sKA}:{sKA+15}], s[0:1], 0")
    if cfg.stamps:
        e(f"v_mov_b32 v{VST}, 0")
    e(f"v_lshrrev_b32 v1, 6, v0")
    e(f"v_and_b32 v{VLANE}, 63, v0")
    e(f"v_readfirstlane_b32 s{sW}, v1")
    L = VLANE
    e(f"s_and_b32 s{sT0}, s2, 7")
    e(f"s_lshr_b32 s{sT1}, s2, 3")
    if cfg.xr == 4:
        e(f"s_lshr_b32 s{sI}, s{sT0}, 1"); e(f"s_lshl_b32 s{sI}, s{sI}, 2")
        e(f"s_lshr_b32 s{sT2}, s{sT1}, 3"); e(f"s_add_u32 s{sI}, s{sI}, s{sT2}")
        e(f"s_and_b32 s{sJ}, s{sT0}, 1"); e(f"s_lshl_b32 s{sJ}, s{sJ}, 3")
        e(f"s_and_b32 s{sT2}, s{sT1}, 7"); e(f"s_add_u32 s{sJ}, s{sJ}, s{sT2}")
    elif cfg.xr == 2:
        e(f"s_lshr_b32 s{sI}, s{sT0}, 2"); e(f"s_lshl_b32 s{sI}, s{sI}, 3")
        e(f"s_lshr_b32 s{sT2}, s{sT1}, 2"); e(f"s_add_u32 s{sI}, s{sI}, s{sT2}")
        e(f"s_and_b32 s{sJ}, s{sT0}, 3"); e(f"s_lshl_b32 s{sJ}, s{sJ}, 2")
        e(f"s_and_b32 s{sT2}, s{sT1}, 3"); e(f"s_add_u32 s{sJ}, s{sJ}, s{sT2}")
    else:
        e(f"s_lshl_b32 s{sI}, s{sT0}, 1")
        e(f"s_lshr_b32 s{sT2}, s{sT1}, 4"); e(f"s_add_u32 s{sI}, s{sI}, s{sT2}")
        e(f"s_and_b32 s{sJ}, s{sT1}, 15")
    e(f"s_lshl_b32 s{sWO}, s{sW}, 12")

    def table_entry(p):
        e(f"s_add_u32 s{sT0}, s{sI}, s{sJ}")
        if p:
            e(f"s_add_u32 s{sT0}, s{sT0}, {p}")
        e(f"s_and_b32 s{sT0}, s{sT0}, 15")
        e(f"s_lshl_b32 s{tX+p}, s{sT0}, 7")
        e(f"s_mul_i32 s{tW+p}, s{sT0}, {64*7168}")
        e(f"s_add_u32 s{tW+p}, s{tW+p}, {SHIFT - 2048*(p & 1)}")
    for p in range(5):
        table_entry(p)
    e(f"v_lshrrev_b32 v1, 3, v{L}")
    e(f"v_and_b32 v2, 7, v{L}")
    e(f"v_lshrrev_b32 v3, 4, v{L}")
    e(f"s_lshl_b32 s{sT0}, s{sI}, 2"); e(f"s_add_u32 s{sT0}, s{sT0}, s{sW}"); e(f"s_lshl_b32 s{sT1}, s{sT0}, 16")
    e(f"v_xor_b32 v4, v2, v3")
    e(f"v_lshlrev_b32 v5, 11, v1")
    e(f"v_add_u32 v5, s{sT1}, v5")
    e(f"v_lshl_add_u32 v{VX}, v4, 4, v5")
    e(f"v_xor_b32 v6, 64, v{VX}")
    e(f"v_add_u32 v{VX+1}, 15360, v6")
    e(f"v_add_u32 v{VX+2}, 30720, v{VX}")
    e(f"v_add_u32 v{VX+3}, 46080, v6")
    e(f"s_and_b32 s{sT1}, s{sJ}, 1")
    e(f"s_mul_i32 s{sT2}, s{sJ}, 448")
    e(f"s_lshl_b32 s{sT0}, s{sT1}, 6")
    e(f"s_add_u32 s{sT2}, s{sT2}, s{sT0}")
    e(f"s_mul_i32 s{sT0}, s{sW}, {8*7168}")
    e(f"s_add_u32 s{sT2}, s{sT2}, s{sT0}")
    e(f"s_and_b32 s{sT0}, s{sW}, 1"); e(f"s_lshl_b32 s{sT0}, s{sT0}, 2")
    e(f"v_and_b32 v4, 1, v3"); e(f"v_lshlrev_b32 v4, 1, v4"); e(f"v_or_b32 v4, s{sT0}, v4")
    e(f"v_xor_b32 v4, v4, v2")
    e(f"v_mul_u32_u24 v5, 7168, v1")
    e(f"v_add_u32 v5, s{sT2}, v5")
    e(f"v_lshl_add_u32 v{VW1A}, v4, 4, v5")
    e(f"v_add_u32 v{VW1B}, {32*7168 - 1024}, v{VW1A}")
    e(f"s_mov_b32 s{RX}, s{kX}"); e(f"s_mov_b32 s{RX+1}, s{kX+1}")
    e(f"s_mov_b32 s{RX+2}, {X_BYTES}"); e(f"s_mov_b32 s{RX+3}, 0x20000")
    xtok = {}

    def x_dma_items(p):
        it = [lambda: e(f"s_add_u32 m0, s{sWO}, {(6 + p % 3) * SLOT}")]
        for q in range(4):
            def f(q=q):
                off = f" offset:{1024*q}" if q else ""
                xtok[p] = e(f"buffer_load_dwordx4 v{VX+q}, {srd(RX)}, s{tX+p} offen{off} lds")
            it.append(f)
        return it
    stamp()
    for f in x_dma_items(0): f()
    e(f"s_sub_u32 s{RW1A}, s{kW1}, {SHIFT}"); e(f"s_subb_u32 s{RW1A+1}, s{kW1+1}, 0")
    e(f"s_mov_b32 s{RW1A+2}, {W1_BYTES + SHIFT}"); e(f"s_mov_b32 s{RW1A+3}, 0x20000")
    for f in x_dma_items(1): f()
    for f in tile_items(0): f()
    e(f"s_add_u32 s{RW1B}, s{RW1A}, 128"); e(f"s_addc_u32 s{RW1B+1}, s{RW1A+1}, 0")
    e(f"s_mov_b32 s{RW1B+2}, {W1_BYTES + SHIFT - 128}"); e(f"s_mov_b32 s{RW1B+3}, 0x20000")
    e(f"s_mov_b32 s{RWS}, s{kWS}"); e(f"s_mov_b32 s{RWS+1}, s{kWS+1}")
    e(f"s_mov_b32 s{RWS+2}, {WS_SIZE}"); e(f"s_mov_b32 s{RWS+3}, 0x20000")
    for f in tile_items(1): f()
    e(f"s_and_b32 s{sT1}, s{sJ}, 1")
    e(f"s_lshl_b32 s{sT1}, s{sT1}, 9")
    e(f"s_sub_u32 s{sT1}, {(384 - 2048) & 0xffffffff}, s{sT1}")
    e(f"s_add_u32 s{sT1}, s{sT1}, s{tW}")
    e(f"s_add_u32 s{sT0}, s{tW}, 256")
    e(f"s_add_u32 m0, s{sWO}, {LDS_TAB}")
    e(f"v_mov_b32 v{VDUM}, 0")
    e(f"buffer_load_dwordx4 v{VW1A}, {srd(RW1A)}, s{sT0} offen lds")
    e(f"buffer_load_dwordx4 v{VW1B}, {srd(RW1A)}, s{sT0} offen offset:1024 lds")
    e(f"buffer_load_dwordx4 v{VW1A}, {srd(RW1A)}, s{sT1} offen offset:2048 lds")
    etok = e(f"buffer_load_dwordx4 v{VW1B}, {srd(RW1A)}, s{sT1} offen offset:3072 lds")
    e(f"buffer_load_dword v{VN}, v{VDUM}, {srd(RWS)}, 0 offen sc1")
    for f in x_dma_items(2): f()
    for p in range(5, 16):
        table_entry(p)
    for f in tile_items(2): f()
    for f in tile_items(3): f()
    e(f"v_lshlrev_b32 v{VL16}, 4, v{L}"); e(f"v_mov_b32 v{VH}, v{VL16}")
    e(f"v_lshlrev_b32 v{VL4}, 2, v{L}")
    e(f"v_lshlrev_b32 v{VF8}, 2, v2")
    e(f"v_and_b32 v7, 15, v{L}")
    e(f"v_lshlrev_b32 v{VF16}, 2, v7")
    e(f"v_lshrrev_b32 v8, 2, v7")
    e(f"v_and_b32 v9, 3, v{L}")
    e(f"v_lshlrev_b32 v9, 3, v9")
    e(f"v_lshrrev_b32 v10, 1, v8")
    e(f"v_and_b32 v11, 1, v3")
    e(f"v_lshl_add_u32 v12, v11, 1, v10")
    e(f"v_lshl_add_u32 v13, v12, 5, v9")
    e(f"v_lshl_add_u32 v14, v8, 7, v13")
    e(f"v_lshl_add_u32 v{TRA}, v3, 12, v14")
    for fb in range(1, 4):
        e(f"v_xor_b32 v{TRA+fb}, {32*fb}, v{TRA}")
    for fb in range(4):
        e(f"v_add_u32 v{TRA+4+fb}, 0x10000, v{TRA+fb}")
    e(f"v_lshrrev_b32 v15, 1, v3")
    e(f"v_lshl_add_u32 v16, v11, 9, v14")
    e(f"v_lshl_add_u32 v16, v15, 12, v16")
    e(f"v_sub_u32 v{VD2}, v16, v{TRA}")
    e(f"v_lshl_add_u32 v16, v8, 6, v9")
    e(f"v_mul_u32_u24 v17, 544, v11")
    e(f"v_add_u32 v16, v16, v17")
    e(f"v_lshl_add_u32 v{TRB}, v15, 12, v16")
    e(f"v_xor_b32 v{TRB+1}, 32, v{TRB}")
    e(f"v_add_u32 v{TRB+2}, 0x10000, v{TRB}")
    e(f"v_add_u32 v{TRB+3}, 0x10000, v{TRB+1}")
    e(f"v_lshrrev_b32 v16, 1, v7")
    e(f"v_xor_b32 v16, v16, v3")
    e(f"v_lshlrev_b32 v16, 4, v16")
    e(f"v_lshl_add_u32 v16, v7, 7, v16")
    e(f"s_add_u32 s{sT0}, s{sWO}, {6*SLOT}")
    e(f"v_add_u32 v{XR}, s{sT0}, v16")
    e(f"v_xor_b32 v{XR+1}, 64, v{XR}")
    e(f"s_lshl_b32 s{sT0}, s{sW}, 14")
    e(f"s_lshl_b32 s{sT1}, s{sW}, 11"); e(f"s_add_u32 s{sT1}, s{sT1}, {LDS_TAB - 4096}")
    e(f"s_cmp_lt_u32 s{sW}, 2"); e(f"s_cselect_b32 s{sT0}, s{sT0}, s{sT1}")
    for fb in range(4):
        e(f"v_add_u32 v{CB+fb}, s{sT0}, v{TRA+fb}")
    e(f"v_lshlrev_b32 v16, 4, v3")
    e(f"v_add_u32 v{VSB}, {LDS_TAB}, v16")
    e(f"s_lshl_b32 s{sT0}, s{sW}, 8"); e(f"s_add_u32 s{sT0}, s{sT0}, {LDS_TAB}")
    e(f"v_add_u32 v{VTW}, s{sT0}, v{VL4}")
    e(f"s_and_b32 s{sT1}, s{sJ}, 1"); e(f"s_cmp_eq_u32 s{sT1}, 0"); e(f"s_cselect_b32 s{sT1}, 384, 0")
    e(f"s_mul_i32 s{sT2}, s{sJ}, 448"); e(f"s_add_u32 s{sT2}, s{sT2}, s{sT1}")
    e(f"s_mul_i32 s{sT0}, s{sW}, {16*7168}"); e(f"s_add_u32 s{sT2}, s{sT2}, s{sT0}")
    e(f"v_lshrrev_b32 v16, 2, v{L}"); e(f"v_mul_u32_u24 v16, 7168, v16"); e(f"v_add_u32 v16, s{sT2}, v16")
    e(f"v_and_b32 v17, 3, v{L}"); e(f"v_lshlrev_b32 v18, 1, v15"); e(f"v_xor_b32 v17, v17, v18")
    e(f"v_lshl_add_u32 v{VW32}, v17, 4, v16")
    e(f"v_lshlrev_b32 v16, 1, v3"); e(f"v_xor_b32 v16, v16, v2"); e(f"v_lshlrev_b32 v16, 4, v16")
    e(f"v_lshl_add_u32 v16, v1, 11, v16"); e(f"s_lshl_b32 s{sT0}, s{sW}, 14"); e(f"v_add_u32 v{VW2}, s{sT0}, v16")
    e(f"s_and_b32 s{sT0}, s{sJ}, 7"); e(f"s_lshl_b32 s{sT0}, s{sT0}, 8")
    e(f"s_lshr_b32 s{sT1}, s{sJ}, 3"); e(f"s_lshl_b32 s{sT1}, s{sT1}, 7")
    e(f"s_add_u32 s{sT1}, s{sT1}, s{sT0}")
    e(f"s_xor_b32 s{sT0}, s{sT1}, 128")
    for h, st in ((0, sT0), (1, sT1)):
        r = RW2[h]
        e(f"s_sub_u32 s{r}, s{kW2}, {SHIFT}"); e(f"s_subb_u32 s{r+1}, s{kW2+1}, 0")
        e(f"s_add_u32 s{r}, s{r}, s{st}"); e(f"s_addc_u32 s{r+1}, s{r+1}, 0")
        e(f"s_sub_u32 s{r+2}, {W2_BYTES + SHIFT}, s{st}"); e(f"s_mov_b32 s{r+3}, 0x20000")
    e(f"s_lshl_b32 s{sT0}, s{sI}, 2"); e(f"s_add_u32 s{sT0}, s{sT0}, s{sW}"); e(f"s_lshl_b32 s{sT2}, s{sT0}, 16")
    e(f"s_add_u32 s{sT2}, s{sT2}, s{sT1}")
    e(f"v_lshlrev_b32 v16, 11, v7"); e(f"v_lshl_add_u32 v16, v11, 5, v16"); e(f"v_lshl_add_u32 v16, v15, 4, v16")
    e(f"v_add_u32 v{VOUT}, s{sT2}, v16")
    e(f"s_mov_b32 s{RB}, s{kB1}"); e(f"s_mov_b32 s{RB+1}, s{kB1+1}"); e(f"s_mov_b32 s{RB+2}, 7168"); e(f"s_mov_b32 s{RB+3}, 0x20000")
    e(f"s_and_b32 s{sT1}, s{sJ}, 1"); e(f"s_lshl_b32 s{sT2}, s{sT1}, 6")
    e(f"s_lshl_b32 s{sT0}, s{sW}, 7"); e(f"s_add_u32 s{sT2}, s{sT2}, s{sT0}")
    e(f"s_mul_i32 s{sT1}, s{sT1}, 448"); e(f"s_sub_u32 s{sT1}, 384, s{sT1}")
    e(f"s_cmp_eq_u32 s{sW}, 3"); e(f"s_cselect_b32 s{sT2}, s{sT1}, s{sT2}")
    e(f"s_mul_i32 s{sT0}, s{sJ}, 448"); e(f"s_add_u32 s{sT2}, s{sT2}, s{sT0}")
    e(f"v_lshlrev_b32 v16, 1, v{L}"); e(f"v_add_u32 v{VB1}, s{sT2}, v16")
    e(f"s_mov_b32 s{sONE}, 0x3f803f80")
    k0 = -2.0 * math.sqrt(2.0 / math.pi) * math.log2(math.e)
    e(f"s_mov_b32 s{sKC}, {fbits(k0 * 0.044715):#x}"); e(f"s_mov_b32 s{sKC+1}, {fbits(k0):#x}")
    e(f"v_mov_b32 v{VK0}, s{sKC+1}")
    e(f"s_lshl_b32 s{sT0}, s{sI}, 2"); e(f"s_add_u32 s{sT0}, s{sT0}, s{sW}")
    e(f"s_lshl_b32 s{sT1}, s{sT0}, 4"); e(f"s_add_u32 s{sT1}, s{sT1}, s{sJ}")
    e(f"s_mul_i32 s{sHST}, s{sT1}, 14336"); e(f"s_add_u32 s{sHST}, s{sHST}, {WS_H}")
    e(f"s_lshr_b32 s{sT1}, s{sJ}, 3"); e(f"s_lshl_b32 s{sT2}, s{sI}, 1"); e(f"s_add_u32 s{sT1}, s{sT1}, s{sT2}")
    e(f"s_lshl_b32 s{sT1}, s{sT1}, 2"); e(f"s_add_u32 s{sT1}, s{sT1}, s{sW}"); e(f"s_lshl_b32 s{sT1}, s{sT1}, 7")
    e(f"s_add_u32 s{sFH}, s{sT1}, {WS_FH}")
    e(f"s_and_b32 s{sT1}, s{sJ}, 7"); e(f"s_lshl_b32 s{sT1}, s{sT1}, 2"); e(f"s_add_u32 s{sFHW}, s{sFH}, s{sT1}")

    xrd = {}

    def x_read_items(p):
        it = []
        for st in range(2):
            for tb in range(2):
                def f(st=st, tb=tb):
                    E.wait(vm=xtok[p])
                    a = 32 * (p // 2) + 8 * (2 * (p % 2) + st) + 4 * tb
                    xrd[p] = e(f"ds_read_b128 {ar(a, 4)}, v{XR+st} offset:{(p % 3)*SLOT + 2048*tb}")
                it.append(f)
        return it
    for f in x_read_items(0): f()
    for st in range(2):
        for tb in range(2):
            xrd[0] = e(f"ds_read_b128 {vr(SB + 8*st + 4*tb, 4)}, v{XR+st} offset:{2048*tb}")
    for f in x_read_items(1): f()
    for tb in range(2):
        for k, rg in enumerate([SB + 8*st + 4*tb + d for st in range(2) for d in range(4)]):
            e(f"v_dot2_f32_bf16 v{AC+tb}, v{rg}, s{sONE}, {'0' if k == 0 else 'v%d' % (AC+tb)}")
            e(f"v_dot2_f32_bf16 v{AC+2+tb}, v{rg}, v{rg}, {'0' if k == 0 else 'v%d' % (AC+2+tb)}")
    E.wait(lg=xrd[1])
    for f in x_dma_items(3): f()
    for f in x_dma_items(4): f()

    def reduce4():
        e(f"v_permlane16_swap_b32 v{AC}, v{AC+1}")
        e(f"v_permlane16_swap_b32 v{AC+2}, v{AC+3}")
        e(f"v_add_f32 v{AC}, v{AC}, v{AC+1}")
        e(f"v_add_f32 v{AC+2}, v{AC+2}, v{AC+3}")
        e(f"v_permlane32_swap_b32 v{AC}, v{AC+2}")
        e(f"v_add_f32 v{AC}, v{AC}, v{AC+2}")
    reduce4()
    e(f"s_lshl_b32 s{sT0}, s{sI}, 2"); e(f"s_add_u32 s{sT0}, s{sT0}, s{sW}")
    e(f"s_lshl_b32 s{sT0}, s{sT0}, 4"); e(f"s_add_u32 s{sT0}, s{sT0}, s{sJ}"); e(f"s_lshl_b32 s{sT0}, s{sT0}, 8")
    e(f"s_add_u32 s{sT0}, s{sT0}, {WS_RS}")
    toks = {}
    toks["rs"] = e(f"buffer_store_dword v{AC}, v{VL4}, {srd(RWS)}, s{sT0} offen sc1")
    E.wait(vm=tile_tok[0])
    e("s_barrier")
    for U in (0, 1):
        for ln in unit(U)[0]:
            e(ln)

    for m in range(4, NSS):
        iv = issue_iv[m]
        same = [k for k in range(NSS) if issue_iv[k] == iv]
        its = tile_items(m)
        if iv == 0:
            add_seq(0, 9, 1, its)
        elif same.index(m) == 0:
            add_seq(iv - 1, 17, 14.0 / len(its), its)
        else:
            add_seq(iv, 1, 14.0 / len(its), its)
    for n in range(14):
        add_seq(n, 0, 1, x_read_items(n + 2))
        if n + 5 < 16:
            its = x_dma_items(n + 5)
            its[0] = (lambda f=its[0], p=n + 2: (E.wait(lg=xrd[p]), f()))
            add_seq(n, 9 if n else 4, 1.3 if n else 1, its)
    pre_barrier[1].append(lambda: E.wait(vm=etok))
    its = []
    for fb in range(4):
        for st in range(2):
            for uu in range(2):
                its.append(lambda fb=fb, st=st, uu=uu: e(
                    f"ds_read_b64_tr_b16 {vr(SB + 8*fb + 4*st + 2*uu, 2)}, v{CB+fb} offset:{1024*st + 512*uu}"))
    add_seq(0, 16, 1, its)
    assert T == SB + 16

    def colsum():
        for fb in range(4):
            for k in range(8):
                e(f"v_dot2_f32_bf16 v{AC+fb}, v{SB + 8*fb + k}, s{sONE}, {'0' if k == 0 else 'v%d' % (AC+fb)}")
        reduce4()
        e(f"s_lshl_b32 s{sT0}, s{sJ}, 2"); e(f"s_add_u32 s{sT0}, s{sT0}, s{sW}")
        e(f"s_lshl_b32 s{sT0}, s{sT0}, 4"); e(f"s_add_u32 s{sT0}, s{sT0}, s{sI}"); e(f"s_lshl_b32 s{sT0}, s{sT0}, 8")
        e(f"s_add_u32 s{sT0}, s{sT0}, {WS_CS}")
        toks["cs"] = e(f"buffer_store_dword v{AC}, v{VL4}, {srd(RWS)}, s{sT0} offen sc1")
        e(f"v_add_u32 v{VN}, 16, v{VN}")
    add(1, 8, colsum)

    def flag_store(vval, soff):
        e("s_mov_b64 exec, 1")
        e(f"buffer_store_dword v{vval}, v{VL4}, {srd(RWS)}, s{soff} offen sc1")
        e("s_mov_b64 exec, -1")

    def stat_flags():
        E.wait(vm=toks["cs"])
        e(f"s_lshl_b32 s{sT0}, s{sI}, 2"); e(f"s_add_u32 s{sT0}, s{sT0}, s{sW}"); e(f"s_lshl_b32 s{sT0}, s{sT0}, 5")
        e(f"s_add_u32 s{sT0}, s{sT0}, s{sJ}"); e(f"s_lshl_b32 s{sT0}, s{sT0}, 2"); e(f"s_add_u32 s{sT0}, s{sT0}, {WS_FR}")
        e(f"s_lshl_b32 s{sT1}, s{sJ}, 4"); e(f"s_add_u32 s{sT1}, s{sT1}, s{sI}"); e(f"s_lshl_b32 s{sT1}, s{sT1}, 2")
        e(f"s_add_u32 s{sT1}, s{sT1}, s{sW}"); e(f"s_lshl_b32 s{sT1}, s{sT1}, 2"); e(f"s_add_u32 s{sT1}, s{sT1}, {WS_FC}")
        e("s_mov_b64 exec, 1")
        e(f"buffer_store_dword v{VN}, v{VL4}, {srd(RWS)}, s{sT0} offen sc1")
        e(f"buffer_store_dword v{VN}, v{VL4}, {srd(RWS)}, s{sT1} offen sc1")
        e("s_mov_b64 exec, -1")
    add(4, 5, stat_flags)

    if cfg.w2_prefetch is not None:
        def w2pre():
            e(f"s_lshr_b32 s{sT0}, s{sJ}, 3"); e(f"s_mul_i32 s{sT0}, s{sT0}, 1792")
            e(f"s_mul_i32 s{sT1}, s{sI}, 112"); e(f"s_add_u32 s{sT0}, s{sT0}, s{sT1}")
            e(f"s_mul_i32 s{sT1}, s{sW}, 28"); e(f"s_add_u32 s{sT0}, s{sT0}, s{sT1}")
            e(f"s_lshl_b32 s{sT0}, s{sT0}, 11"); e(f"s_add_u32 s{sT0}, s{sT0}, {SHIFT}")
            e(f"v_min_u32 v{TA}, 27, v{VLANE}"); e(f"v_lshlrev_b32 v{TA}, 11, v{TA}")
            e("s_mov_b64 exec, 0xfffffff")
            e(f"buffer_load_dword v{VDUM}, v{TA}, {srd(RW2[0])}, s{sT0} offen")
            e(f"buffer_load_dword v{VDUM}, v{TA}, {srd(RW2[1])}, s{sT0} offen")
            e("s_mov_b64 exec, -1")
        add(cfg.w2_prefetch, 20, w2pre)

    sFR = RB
    sPR = SA.get("pr"); sPC = SA.get("pc")

    def stat_poll():
        e(f"s_lshl_b32 s{sT0}, s{sI}, 2"); e(f"s_add_u32 s{sT0}, s{sT0}, s{sW}"); e(f"s_lshl_b32 s{sT0}, s{sT0}, 7")
        e(f"s_add_u32 s{sPR}, s{sT0}, {WS_FR}")
        e(f"s_lshl_b32 s{sT1}, s{sJ}, 8"); e(f"s_add_u32 s{sPC}, s{sT1}, {WS_FC}")
        e(f"buffer_load_dword v{VPOLL}, v{VF16}, {srd(RWS)}, s{sPR} offen sc1")
        e(f"buffer_load_dword v{VPOLL2}, v{VL4}, {srd(RWS)}, s{sPC} offen sc1")
    add(8, 5, stat_poll)

    def stat_check():
        poll_check(VPOLL, VF16, sPR, None)
        poll_check(VPOLL2, VL4, sPC, None)
        e(f"s_lshl_b32 s{sT0}, s{sI}, 2"); e(f"s_add_u32 s{sT0}, s{sT0}, s{sW}"); e(f"s_lshl_b32 s{sT0}, s{sT0}, 12")
        e(f"s_add_u32 s{sPR}, s{sT0}, {WS_RS}")
        e(f"s_lshl_b32 s{sT0}, s{sJ}, 2"); e(f"s_add_u32 s{sT0}, s{sT0}, s{sW}"); e(f"s_lshl_b32 s{sT0}, s{sT0}, 12")
        e(f"s_add_u32 s{sPC}, s{sT0}, {WS_CS}")
    add(10, 5, stat_check)
    its = [lambda k=k: e(f"buffer_load_dword v{SB+k}, v{VL4}, {srd(RWS)}, s{sPC} offen offset:{256*k} sc1") for k in range(16)]
    its.append(lambda: e(f"buffer_load_ushort v{VB1}, v{VB1}, {srd(RB)}, 0 offen"))
    add_seq(10, 6, 1.5, its)
    its = [lambda k=k: e(f"buffer_load_dword v{T+k}, v{VL4}, {srd(RWS)}, s{sPR} offen offset:{256*k} sc1") for k in range(16)]
    add_seq(11, 4, 1.7, its)
    its = []
    for d in (8, 4, 2, 1):
        for k in range(d):
            its.append(lambda k=k, d=d: e(f"v_add_f32 v{SB+k}, v{SB+k}, v{SB+k+d}"))
    its.append(lambda: e(f"v_lshlrev_b32 v{VB1}, 16, v{VB1}"))
    its.append(lambda: e(f"ds_write_b32 v{VTW}, v{SB}"))

    def wr_b():
        toks["tab"] = e(f"ds_write_b32 v{VTW}, v{VB1} offset:1024")
    its.append(wr_b)
    add_seq(13, 4, 1.5, its)
    pre_barrier[15].append(lambda: E.wait(lg=toks["tab"]))
    its = []
    for d in (8, 4, 2, 1):
        for k in range(d):
            its.append(lambda k=k, d=d: e(f"v_add_f32 v{T+k}, v{T+k}, v{T+k+d}"))
    for ln in [f"v_mul_f32 v{T}, {fbits(1.0/1024):#x}, v{T}", f"v_mov_b32 v{T+1}, v{T}",
               f"v_permlane32_swap_b32 v{T}, v{T+1}",
               f"v_fma_f32 v{T+1}, -v{T}, v{T}, v{T+1}", f"v_max_f32 v{T+1}, 0, v{T+1}",
               f"v_add_f32 v{T+1}, {fbits(1e-5):#x}, v{T+1}", f"v_rsq_f32 v{RR}, v{T+1}",
               f"v_mul_f32 v{NM}, -v{T}, v{RR}", f"v_mov_b32 v{RR+1}, v{RR}", f"v_mov_b32 v{NM+1}, v{NM}",
               f"v_permlane16_swap_b32 v{RR}, v{RR+1}", f"v_permlane16_swap_b32 v{NM}, v{NM+1}"]:
        its.append(lambda ln=ln: e(ln))
    add_seq(14, 2, 1.1, its)

    its = []
    for pos in range(8):
        for ln in [f"s_add_u32 s{sT0}, s{sI}, s{sJ}", f"s_add_u32 s{sT0}, s{sT0}, {pos}", f"s_and_b32 s{sT0}, s{sT0}, 7",
                   f"s_and_b32 s{sT1}, s{sJ}, 8", f"s_or_b32 s{sT0}, s{sT0}, s{sT1}",
                   f"s_sub_u32 s{sT1}, s{sT0}, s{sJ}", f"s_mul_i32 s{sT1}, s{sT1}, 14336",
                   f"s_add_u32 s{tH+pos}, s{sT1}, s{sHST}",
                   f"s_mul_i32 s{sT1}, s{sT0}, {224*2048}", f"s_and_b32 s{sT0}, s{sT0}, 1",
                   f"s_lshl_b32 s{sT2}, s{sT0}, 16", f"s_add_u32 s{sT1}, s{sT1}, s{sT2}",
                   f"s_add_u32 s{tW2+pos}, s{sT1}, {SHIFT - 1024*(pos % 4)}",
                   f"s_mul_i32 s{sT0}, s{sT0}, {224*2048}", f"s_sub_u32 s{tW2b+pos}, s{tW2+pos}, s{sT0}"]:
            its.append(ln)

    def tabs(lo, hi):
        for ln in its_tab[lo:hi]:
            e(ln)
    its_tab = its
    for pos in range(8):
        add(12 + pos // 2, 15 if pos % 2 == 0 else 31, lambda pos=pos: tabs(15 * pos, 15 * pos + 15))

    htok = {}

    def gelu_reads(b):
        its = []
        if b == 6:
            def fix():
                e(f"s_and_b32 s{sT0}, s{sJ}, 1"); e(f"s_lshl_b32 s{sT0}, s{sT0}, 7")
                e(f"v_add_u32 v{VSB}, s{sT0}, v{VSB}")
            its.append(fix)
        for fb in range(2):
            its.append(lambda fb=fb: e(f"ds_read_b128 {vr(SB + 4*fb, 4)}, v{VSB} offset:{(32*b + 16*fb)*4}"))
            its.append(lambda fb=fb: e(f"ds_read_b128 {vr(SB + 8 + 4*fb, 4)}, v{VSB} offset:{1024 + (32*b + 16*fb)*4}"))
        return its

    def gelu(b):
        A = 16 * b
        el = [(fb, tb, h) for fb in range(2) for tb in range(2) for h in range(2)]
        a2 = lambda fb, tb, h: A + 8 * fb + 4 * tb + 2 * h
        t2 = lambda fb, tb, h: T + 8 * fb + 4 * tb + 2 * h
        if cfg.gelu == "pk":
            for fb, tb, h in el:
                e(f"v_pk_fma_f32 {vr(t2(fb,tb,h),2)}, {vr(NM,2)}, {vr(SB+4*fb+2*h,2)}, {vr(SB+8+4*fb+2*h,2)} op_sel:[{tb},0,0] op_sel_hi:[{tb},1,1]")
            for fb, tb, h in el:
                e(f"v_pk_fma_f32 {vr(a2(fb,tb,h),2)}, {vr(RR,2)}, {vr(a2(fb,tb,h),2)}, {vr(t2(fb,tb,h),2)} op_sel:[{tb},0,0] op_sel_hi:[{tb},1,1]")
            for x in el:
                e(f"v_pk_mul_f32 {vr(t2(*x),2)}, {vr(a2(*x),2)}, {vr(a2(*x),2)}")
            for x in el:
                e(f"v_pk_fma_f32 {vr(t2(*x),2)}, {vr(t2(*x),2)}, s[{sKC}:{sKC+1}], s[{sKC}:{sKC+1}] op_sel:[0,0,1] op_sel_hi:[1,0,1]")
            for x in el:
                e(f"v_pk_mul_f32 {vr(t2(*x),2)}, {vr(t2(*x),2)}, {vr(a2(*x),2)}")
            for k in range(16):
                e(f"v_exp_f32 v{T+k}, v{T+k}")
            for x in el:
                e(f"v_pk_add_f32 {vr(t2(*x),2)}, {vr(t2(*x),2)}, 1.0 op_sel_hi:[1,0]")
            for k in range(16):
                e(f"v_rcp_f32 v{T+k}, v{T+k}")
            for x in el:
                e(f"v_pk_mul_f32 {vr(a2(*x),2)}, {vr(a2(*x),2)}, {vr(t2(*x),2)}")
        else:
            idx = [(fb, tb, r) for fb in range(2) for tb in range(2) for r in range(4)]
            for k, (fb, tb, r) in enumerate(idx):
                e(f"v_fma_f32 v{T+k}, v{NM+tb}, v{SB+4*fb+r}, v{SB+8+4*fb+r}")
            for k, (fb, tb, r) in enumerate(idx):
                e(f"v_fma_f32 v{A+k}, v{RR+tb}, v{A+k}, v{T+k}")
            for k in range(16): e(f"v_mul_f32 v{T+k}, v{A+k}, v{A+k}")
            for k in range(16): e(f"v_fma_f32 v{T+k}, v{T+k}, s{sKC}, v{VK0}")
            for k in range(16): e(f"v_mul_f32 v{T+k}, v{T+k}, v{A+k}")
            for k in range(16): e(f"v_exp_f32 v{T+k}, v{T+k}")
            for k in range(16): e(f"v_add_f32 v{T+k}, 1.0, v{T+k}")
            for k in range(16): e(f"v_rcp_f32 v{T+k}, v{T+k}")
            for k in range(16): e(f"v_mul_f32 v{A+k}, v{A+k}, v{T+k}")

    def gelu_out(b):
        A = 16 * b
        its = []
        for tb in range(2):
            for fb in range(2):
                for h in range(2):
                    r = A + 8 * fb + 4 * tb + 2 * h
                    its.append(lambda tb=tb, fb=fb, h=h, r=r: e(f"v_cvt_pk_bf16_f32 v{PK + 4*tb + 2*fb + h}, v{r}, v{r+1}"))

            def st(tb=tb):
                htok[b] = e(f"buffer_store_dwordx4 {vr(PK + 4*tb, 4)}, v{VL16}, {srd(RWS)}, s{sHST} offen offset:{2048*(b % 2) + 1024*tb} sc1")
            its.append(st)
        if b % 2 == 1:
            its.append(lambda: e(f"s_add_u32 s{sHST}, s{sHST}, 4096"))
        return its
    ready = [16, 16, 16, 16, 24, 24, 28]
    for b in range(7):
        n = cfg.gelu_at[b]
        assert n >= ready[b]
        add_seq(n, 0, 1, gelu_reads(b))
        add(n, 12, lambda b=b: gelu(b))
        add_seq(n, 13, 1.5, gelu_out(b))
    lastb = [1, 3, 5, 6]
    for k in range(4):
        def fl(k=k):
            e(f"v_add_u32 v{VFL}, {k+1}, v{VN}")
            E.wait(vm=htok[lastb[k]])
            flag_store(VFL, sFHW)
        assert cfg.flag_at[k] > cfg.gelu_at[lastb[k]]
        add(cfg.flag_at[k], 8, fl)

    add_seq(24, 18, 1, [lambda k=k: e(f"v_add_u32 v{TRA+k}, v{TRA+k}, v{VD2}") for k in range(8)])
    nb = max(cfg.gelu_at[3] + 1, 22)

    def b2load():
        e(f"s_mov_b32 s{RB}, s{kB2}"); e(f"s_mov_b32 s{RB+1}, s{kB2+1}"); e(f"s_mov_b32 s{RB+2}, 2048")
        e(f"s_and_b32 s{sT0}, s{sJ}, 7"); e(f"s_lshl_b32 s{sT0}, s{sT0}, 8")
        e(f"s_lshr_b32 s{sT1}, s{sJ}, 3"); e(f"s_lshl_b32 s{sT1}, s{sT1}, 7"); e(f"s_add_u32 s{sT0}, s{sT0}, s{sT1}")
        e(f"v_lshrrev_b32 v{VFL}, 4, v{VLANE}"); e(f"v_lshlrev_b32 v{VFL}, 3, v{VFL}")
        for db in range(4):
            e(f"buffer_load_dwordx2 {vr(BR + 2*db, 2)}, v{VFL}, {srd(RB)}, s{sT0} offen offset:{32*db}")
        e(f"s_mov_b32 s{ROUT}, s{kOUT}"); e(f"s_mov_b32 s{ROUT+1}, s{kOUT+1}")
    add(nb, 2, b2load)
    its = []
    for db in range(4):
        for tb in range(2):
            for r in range(4):
                d = 32 + 8 * db + 4 * tb + r; s_ = BR + 2 * db + r // 2
                its.append(lambda d=d, s_=s_, r=r: e(
                    f"v_and_b32 v{d}, 0xffff0000, v{s_}" if r & 1 else f"v_lshlrev_b32 v{d}, 16, v{s_}"))
    assert nb + 3 <= 27
    add_seq(nb + 2, 14, 1, its[:16]); add_seq(nb + 3, 14, 1, its[16:])

    h_last = need[13] - 2
    h_iss = {g: cfg.h_first + round(g * (h_last - cfg.h_first) / 13.0) for g in range(14)}
    for g in range(14):
        h_iss[g] = min(h_iss[g], need[g] - 2)
        assert h_iss[g] > (24 + g // 2 if g < 8 else last[g - 8]), (g, h_iss[g])
        b = g // 2
        its = []
        if g % 4 == 0 and g:
            its.append(lambda: e(f"v_add_u32 v{VH}, 4096, v{VH}"))
        for st in range(4):
            for tb in range(2):
                its.append(lambda g=g, st=st, tb=tb, b=b: e(
                    f"buffer_load_dwordx4 {ar(32*(g % 8) + 8*st + 4*tb, 4)}, v{VH}, {srd(RWS)}, s{tH + 4*(g % 2) + st} offen offset:{2048*(b % 2) + 1024*tb} sc1"))
        add_seq(h_iss[g], 1, 14.0 / len(its), its)
    for k in range(4):
        t = h_iss[4 * k]
        add(t - 2, 30, lambda: e(f"buffer_load_dword v{VPOLL}, v{VF8}, {srd(RWS)}, s{sFH} offen sc1"))
        add(t, 0, lambda k=k: poll_check(VPOLL, VF8, sFH, k + 1))

    def p_addr():
        e(f"s_lshl_b32 s{sT0}, s{sI}, 4"); e(f"s_add_u32 s{sT0}, s{sT0}, s{sJ}")
        e(f"s_lshl_b32 s{sT1}, s{sT0}, 2"); e(f"s_add_u32 s{sT1}, s{sT1}, s{sW}"); e(f"s_lshl_b32 s{sT1}, s{sT1}, 13")
        e(f"s_add_u32 s{sHST}, s{sT1}, {WS_P}")
        e(f"s_xor_b32 s{sT1}, s{sT1}, {8*4*8192}"); e(f"s_add_u32 s{sPR}, s{sT1}, {WS_P}")
        e(f"s_lshl_b32 s{sT0}, s{sT0}, 7"); e(f"s_lshl_b32 s{sT1}, s{sW}, 2"); e(f"s_add_u32 s{sT0}, s{sT0}, s{sT1}")
        e(f"s_add_u32 s{sFHW}, s{sT0}, {WS_FP}")
        e(f"s_xor_b32 s{sT0}, s{sT0}, {8*128}"); e(f"s_add_u32 s{sPC}, s{sT0}, {WS_FP}")
        e(f"v_add_u32 v{VH}, 4096, v{VL16}")
        e(f"v_mov_b32 v{VF8}, 0")
    tail_mode = ng == 0

    def p_store_items():
        its = []
        for k in range(8):
            def f(k=k):
                toks["p"] = e(f"buffer_store_dwordx4 {vr(4*k, 4)}, v{VH if k >= 4 else VL16}, {srd(RWS)}, s{sHST} offen offset:{1024*(k % 4)} sc1")
            its.append(f)
        return its

    def p_flag():
        E.wait(vm=toks["p"])
        flag_store(VN, sFHW)

    def p_poll():
        e(f"buffer_load_dword v{VPOLL}, v{VF8}, {srd(RWS)}, s{sPC} offen sc1")

    def p_load_items():
        return [lambda k=k: e(f"buffer_load_dwordx4 {vr(64 + 4*k, 4)}, v{VH if k >= 4 else VL16}, {srd(RWS)}, s{sPR} offen offset:{1024*(k % 4)} sc1") for k in range(8)]
    add(max(lastR, h_iss[13] + 1), 28, p_addr)
    after = []

    def place(n, gap, step, its):
        if n < NSS:
            add_seq(n, gap, step, its)
        else:
            after.extend(its)
    place(lastR + cfg.p_store, 2, 1.5, p_store_items())
    place(lastR + cfg.p_flag, 4, 1, [p_flag])
    place(lastR + cfg.p_poll, 4, 1, [p_poll])
    place(lastR + cfg.p_chk, 4, 1, [lambda: poll_check(VPOLL, VF8, sPC, None)] + p_load_items())

    for n in range(NSS):
        stamp()
        items = sorted(side[n])
        qi = 0
        for u in range(4):
            U = 4 * n + u
            if u == 2 and n + 1 < NSS:
                for f in pre_barrier[n + 1]:
                    f()
                E.wait(vm=tile_tok[n + 1])
                e("s_barrier")
            _, mf, fregs = unit(U)
            reads = unit(U + 2)[0] if U + 2 < 4 * NSS else []
            E.wait_regs(fregs)
            for g in range(8):
                gap = 8 * u + g
                e(mf[g])
                if reads:
                    e(reads[g])
                lim = 16 if gap < 16 else 32
                due = [it for it in items[qi:] if it[0] < lim]
                quota = math.ceil(len(due) / (lim - gap)) if due else 0
                cnt = 0
                while qi < len(items) and items[qi][0] <= gap and cnt < max(1, quota):
                    items[qi][2](); qi += 1; cnt += 1
        while qi < len(items):
            items[qi][2](); qi += 1
    stamp()
    for f in after:
        f()
    for pr in range(2):
        for tb in range(2):
            o = PK + 4 * ((pr * 2 + tb) % 2)
            for d in range(2):
                a = 32 + 8 * (2 * pr + d) + 4 * tb
                e(f"v_pk_add_f32 {vr(a, 2)}, {vr(a, 2)}, {vr(a + 32, 2)}")
                e(f"v_pk_add_f32 {vr(a + 2, 2)}, {vr(a + 2, 2)}, {vr(a + 34, 2)}")
            for d in range(2):
                a = 32 + 8 * (2 * pr + d) + 4 * tb
                e(f"v_cvt_pk_bf16_f32 v{o + 2*d}, v{a}, v{a+1}")
                e(f"v_cvt_pk_bf16_f32 v{o + 2*d + 1}, v{a+2}, v{a+3}")
            e(f"v_permlane16_swap_b32 v{o}, v{o+2}")
            e(f"v_permlane16_swap_b32 v{o+1}, v{o+3}")
            if pr == 0 and tb == 0:
                e(f"s_mov_b32 s{sT0}, 0x8000")
            so = f"s{sT0}" if tb else "0"
            e(f"buffer_store_dwordx4 {vr(o, 4)}, v{VOUT}, {srd(ROUT)}, {so} offen offset:{64*pr}")
    stamp()
    e(f"s_or_b32 s{sT0}, s2, s{sW}")
    e(f"s_cmp_lg_u32 s{sT0}, 0")
    e(f"s_cbranch_scc1 L_noe")
    e("s_mov_b64 exec, 1")
    e(f"buffer_store_dword v{VN}, v{VL4}, {srd(RWS)}, 0 offen sc1")
    e("s_mov_b64 exec, -1")
    E.label("L_noe")
    if cfg.stamps:
        e("s_waitcnt vmcnt(0)")
        stamp(); e("s_waitcnt lgkmcnt(0)"); stamp()
        e(f"s_memrealtime s[{sSTA}:{sSTA+1}]"); e("s_waitcnt lgkmcnt(0)")
        e(f"v_writelane_b32 v{VST}, s{sSTA}, 63")
        e(f"s_lshl_b32 s{sT0}, s2, 2"); e(f"s_add_u32 s{sT0}, s{sT0}, s{sW}"); e(f"s_lshl_b32 s{sT0}, s{sT0}, 8")
        e(f"s_add_u32 s{sT0}, s{sT0}, {WS_ST}")
        e(f"buffer_store_dword v{VST}, v{VL4}, {srd(RWS)}, s{sT0} offen")
    if cfg.diag:
        e("s_waitcnt vmcnt(0)"); stamp(); e("s_waitcnt lgkmcnt(0)")
        e(f"s_cmp_lg_u32 s2, 8"); e(f"s_cbranch_scc1 L_end")
        e(f"s_sub_u32 s{sT0}, s{sDG+2}, s{sDG}"); e(f"s_mul_i32 s{sT0}, s{sT0}, {cfg.diag[2]}")
        e(f"s_min_u32 s{sT0}, s{sT0}, 100000")
        e(f"s_memrealtime s[{sDG}:{sDG+1}]"); e("s_waitcnt lgkmcnt(0)")
        E.label("L_dg")
        e(f"s_memrealtime s[{sDG+2}:{sDG+3}]"); e("s_waitcnt lgkmcnt(0)")
        e(f"s_sub_u32 s{sT1}, s{sDG+2}, s{sDG}"); e(f"s_cmp_lt_u32 s{sT1}, s{sT0}"); e("s_cbranch_scc1 L_dg")
    E.label("L_end")
    e("s_endpgm")

    head = f"""; Fused LayerNorm -> x@w1 + b1 -> GELU(tanh) -> h@w2 + b2, generated by gen/gen_fused.py
; @launch grid=(256,1,1) block=(256,1,1) lds=163840
.amdgcn_target "amdgcn-amd-amdhsa--gfx950"
.text
.globl {KNAME}
.p2align 8
.type {KNAME},@function
{KNAME}:
"""
    foot = f""".section .rodata,"a"
.p2align 6
.amdhsa_kernel {KNAME}
  .amdhsa_next_free_vgpr 512
  .amdhsa_next_free_sgpr 102
  .amdhsa_accum_offset 256
  .amdhsa_group_segment_fixed_size 0
  .amdhsa_kernarg_size 64
  .amdhsa_user_sgpr_count 2
  .amdhsa_user_sgpr_kernarg_segment_ptr 1
  .amdhsa_system_sgpr_workgroup_id_x 1
  .amdhsa_float_denorm_mode_32 3
.end_amdhsa_kernel
"""
    info = dict(stats=E.stats(), nops=E.nops, vmax=VA.high, smax=SA.high, max_vm=E.max_vm, h_iss=h_iss,
                issue_iv=issue_iv, slot_of=slot_of, nstamp=nstamp[0])
    txt = head + E.text() + foot
    if cfg.lst:
        line = "; @launch grid=(256,1,1) block=(256,1,1) lds=163840\n"
        ls = ""
        for k in cfg.lst:
            if k == "m":
                ls += f"; @launch kernel={KNAME} grid=(256,1,1) block=(256,1,1) lds=163840\n"
            else:
                ls += f"; @launch kernel=empty_kernel grid=(256,1,1) block=(256,1,1) lds=0\n"
        txt = txt.replace(line, ls)
        if "e" in cfg.lst:
            txt = txt.replace('.section .rodata,"a"', '.globl empty_kernel\n.p2align 8\n.type empty_kernel,@function\nempty_kernel:\ns_endpgm\n.section .rodata,"a"')
            txt += foot.replace(KNAME, "empty_kernel").replace('.section .rodata,"a"\n', '').replace("512", "256")
    return txt, info


if __name__ == "__main__":
    cfg = Cfg()
    out = sys.argv[1]
    for kv in sys.argv[2:]:
        k, v = kv.split("=", 1)
        setattr(cfg, k, eval(v))
    s, info = gen(cfg)
    open(out, "w").write(s)
    print(info)
```
